```python
import torch

def _softmax(x, axis=-1):
    return torch.softmax(x, dim=axis)
def _gelu(x):
    return torch.nn.functional.gelu(x, approximate="tanh")
def _silu(x):
    return torch.nn.functional.silu(x)
def _sigmoid(x):
    return torch.sigmoid(x)
def _layernorm(x, axis=-1, eps=1e-5):
    m = x.mean(dim=axis, keepdim=True)
    v = x.var(dim=axis, keepdim=True, unbiased=False)
    return (x - m) / torch.sqrt(v + eps)
def _scatter_add(tgt, idx, src, axis=0):
    return tgt.clone().index_add_(axis, idx, src)
def _segment_sum(src, seg, n):
    out = torch.zeros((n,) + src.shape[1:], dtype=src.dtype)
    return out.index_add_(0, seg, src)
def _pad(x, pw):
    flat = tuple(v for pair in reversed(pw) for v in pair)
    return torch.nn.functional.pad(x, flat)

kernel_name = 'interleave_layers__spectral_gfnet__softmax_full_mha__prompt'

def setup_inputs():

    _w = (lambda a: (lambda t: t.to(torch.bfloat16) if t.is_floating_point() else t)(torch.as_tensor(a)))
    def _A_setup():
        B, S, D = 1, 2048, 512
        Df = D // 2 + 1
        return {
            "x": _w((lambda *s: torch.randn(*s, dtype=torch.bfloat16) * 0.05)(B, S, D)),
            "w_r": _w((lambda *s: torch.randn(*s, dtype=torch.bfloat16) * 0.8)(S, Df) * 0.02),
            "w_i": _w((lambda *s: torch.randn(*s, dtype=torch.bfloat16) * 0.8)(S, Df) * 0.02),
        }
    _A_in = _A_setup()

    def _B_setup():
        B, S, D = 1, 2048, 512
        return {
            "x": _w((lambda *s: torch.randn(*s, dtype=torch.bfloat16) * 0.05)(B, S, D)),
            "wqkv": _w((lambda *s: torch.randn(*s, dtype=torch.bfloat16) * 0.05)(D, 3 * D)),
            "wo": _w((lambda *s: torch.randn(*s, dtype=torch.bfloat16) * 0.05)(D, D)),
        }
    _B_in = _B_setup()

    return {
        "A_x": _A_in["x"],
        "A_w_r": _A_in["w_r"],
        "A_w_i": _A_in["w_i"],
        "B_x": _B_in["x"],
        "B_wqkv": _B_in["wqkv"],
        "B_wo": _B_in["wo"],
    }

def reference(A_x, A_w_r, A_w_i, B_x, B_wqkv, B_wo):
    def _A_ref(x, w_r, w_i):
        B, S, D = x.shape
        X = (lambda x, axes=(-2,-1): torch.fft.rfft2(x.float(), dim=axes))(x, axes=(-2, -1))
        W = w_r + 1j * w_i
        X = X * W
        y = (lambda x, s, axes=(-2,-1): torch.fft.irfft2(x, s=s, dim=axes).to(torch.bfloat16))(X, (S, D), axes=(-2, -1))
        return y

    def _B_ref(x, wqkv, wo):
        B, S, D = x.shape
        H = 32; Dh = D // H
        qkv = (lambda x, *d: x.permute(*d))((x @ wqkv).reshape(B, S, 3, H, Dh), 2, 0, 3, 1, 4)
        q, k, v = qkv[0], qkv[1], qkv[2]
        scale = Dh ** -0.5
        scores = torch.einsum("bhqd,bhkd->bhqk", q, k) * scale
        p = _softmax(scores, axis=-1)
        o = torch.einsum("bhqk,bhkd->bhqd", p, v)
        return (lambda x, *d: x.permute(*d))(o, 0, 2, 1, 3).reshape(B, S, D) @ wo

    x = A_x
    x = x + _A_ref(_layernorm(x, axis=-1), A_w_r, A_w_i)
    x = x + _B_ref(_layernorm(x, axis=-1), B_wqkv, B_wo)
    x = x + _A_ref(_layernorm(x, axis=-1), A_w_r, A_w_i)
    x = x + _B_ref(_layernorm(x, axis=-1), B_wqkv, B_wo)
    return x
```

```python
import re, struct

def f2u(x):
    return struct.unpack("<I", struct.pack("<f", x))[0]

def fhex(x):
    return "0x%08x" % f2u(x)

_REG = re.compile(r"^(-?)(abs\()?([vsa])(?:(\d+)|\[(\d+):(\d+)\])\)?$")

def regs_of(tok):
    tok = tok.strip()
    if tok.startswith("|") and tok.endswith("|"):
        tok = tok[1:-1]
    if tok.startswith("-|") and tok.endswith("|"):
        tok = tok[2:-1]
    if tok in ("vcc", "vcc_lo", "vcc_hi"):
        return [("s", "vcc")]
    if tok in ("exec", "exec_lo", "exec_hi"):
        return [("s", "exec")]
    if tok == "m0":
        return [("s", "m0")]
    m = _REG.match(tok)
    if not m:
        return []
    c = m.group(3)
    if m.group(4) is not None:
        return [(c, int(m.group(4)))]
    return [(c, i) for i in range(int(m.group(5)), int(m.group(6)) + 1)]

TRANS = ("v_exp_f32", "v_log_f32", "v_rcp_f32", "v_rsq_f32", "v_sqrt_f32", "v_sin_f32", "v_cos_f32",
         "v_exp_f16", "v_rcp_iflag_f32")

class Ins:
    __slots__ = ("text", "op", "ops", "kind", "wr", "rd", "passes", "srcc", "ab", "wide", "data", "mods")
    def __init__(self, text):
        self.text = text
        t = text.split(";")[0].strip()
        parts = t.split(None, 1)
        self.op = op = parts[0]
        rest = parts[1] if len(parts) > 1 else ""
        ops, depth, cur = [], 0, ""
        for ch in rest:
            if ch in "[(":
                depth += 1
            if ch in "])":
                depth -= 1
            if ch == "," and depth == 0:
                ops.append(cur.strip()); cur = ""
            else:
                cur += ch
        if cur.strip():
            ops.append(cur.strip())
        mods = ""
        if ops:
            last = ops[-1].split(None, 1)
            ops[-1] = last[0]
            mods = last[1] if len(last) > 1 else ""
        self.ops, self.mods = ops, mods
        self.wr, self.rd = [], []
        self.passes = 0; self.srcc = []; self.ab = []; self.wide = False; self.data = []
        R = lambda i: regs_of(ops[i]) if i < len(ops) else []
        allr = lambda a: [r for o in ops[a:] for r in regs_of(o)]
        if op.startswith("v_mfma"):
            self.kind = "mfma"
            self.passes = 8 if "32x32" in op else 4
            self.wr = R(0); self.ab = R(1) + R(2); self.srcc = R(3); self.rd = self.ab + self.srcc
        elif op.startswith("v_"):
            self.kind = "valu"
            if op.startswith("v_permlane") and "swap" in op:
                self.wr = R(0) + R(1); self.rd = R(0) + R(1)
            elif op.startswith("v_cmp"):
                self.wr = R(0); self.rd = allr(1)
                if op.startswith("v_cmpx"):
                    self.wr = self.wr + [("s", "exec")]
            elif op.startswith(("v_add_co", "v_sub_co", "v_addc_co", "v_subb_co")):
                self.wr = R(0) + R(1); self.rd = allr(2)
            else:
                self.wr = R(0); self.rd = allr(1)
                if op.startswith(("v_fmac", "v_dot2c", "v_mac")) or "UNUSED_PRESERVE" in mods or "_dpp" in op or "d16" in op:
                    self.rd = self.rd + R(0)
                if op.startswith("v_cndmask") and len(ops) == 3:
                    self.rd = self.rd + [("s", "vcc")]
        elif op.startswith("ds_"):
            self.kind = "ds"
            if op.startswith(("ds_read", "ds_bpermute", "ds_permute", "ds_swizzle")):
                self.wr = R(0); self.rd = allr(1)
            else:
                self.rd = allr(0)
        elif op.startswith(("buffer_", "global_")):
            self.kind = "vmem"
            islds = (" lds" in (" " + mods)) or "load_lds" in op
            if "load" in op and not islds:
                self.wr = R(0); self.rd = allr(1)
                if "d16" in op:
                    self.rd = self.rd + R(0)
            else:
                self.rd = allr(0)
                if islds:
                    self.rd = self.rd + [("s", "m0")]
                    self.kind = "vmem"
                if "store" in op and ("x4" in op or "x3" in op):
                    self.wide = True
                    self.data = R(0) if op.startswith("buffer_") else R(1)
                if "atomic" in op and "sc0" in mods:
                    self.wr = R(0)
        elif op.startswith("s_"):
            self.kind = "salu"
            if op.startswith(("s_cmp", "s_waitcnt", "s_barrier", "s_nop", "s_branch", "s_cbranch", "s_endpgm",
                              "s_setprio", "s_sleep", "s_bitcmp")):
                self.rd = allr(0)
            elif "saveexec" in op:
                self.wr = R(0) + [("s", "exec")]; self.rd = allr(1)
            else:
                self.wr = R(0); self.rd = allr(1)
        else:
            raise ValueError("unknown op " + text)

    def states(self):
        if self.op == "s_nop":
            return int(self.ops[0], 0) + 1
        return 1

def need(p, c):
    n = 0
    pw, cr, cw = set(p.wr), set(c.rd), set(c.wr)
    pv = {r for r in pw if r[0] in "va"}
    ps = {r for r in pw if r[0] == "s"}
    if p.kind == "valu":
        if pv:
            if c.kind == "mfma" and pv & cr: n = max(n, 2)
            if c.op.startswith(("v_readlane", "v_readfirstlane")) and pv & cr: n = max(n, 1)
            if c.op.startswith("v_permlane") and pv & cr: n = max(n, 2)
            if c.kind == "valu" and "_dpp" in c.op and pv & cr: n = max(n, 2)
            if p.op in TRANS and c.kind in ("valu", "mfma") and c.op not in TRANS and pv & cr: n = max(n, 1)
            if ("sdwa" in p.op or "op_sel" in p.mods) and c.kind == "valu" and pv & (cr | cw): n = max(n, 1)
            if p.op.startswith("v_dot") and c.kind in ("valu", "mfma", "ds", "vmem"):
                if c.op == p.op:
                    ab = set(regs_of(c.ops[1]) + regs_of(c.ops[2]))
                    if pv & ab: n = max(n, 3)
                elif pv & (cr | cw): n = max(n, 3)
        if ps:
            if c.kind == "vmem" and ps & cr: n = max(n, 5)
            if c.kind == "valu" and ps & cr: n = max(n, 2)
            if c.op.startswith(("v_readlane", "v_writelane")) and ps & cr: n = max(n, 4)
            if c.kind == "salu" and ps & cr: n = max(n, 1)
            if ("s", "exec") in ps:
                if c.kind == "mfma": n = max(n, 4)
                if c.op.startswith(("v_readlane", "v_readfirstlane", "v_writelane", "v_permlane")): n = max(n, 4)
                if "_dpp" in c.op: n = max(n, 5)
            if c.op.startswith("s_cbranch_vcc") and ("s", "vcc") in ps: n = max(n, 5)
    if p.kind == "mfma":
        big = 12 if p.passes == 8 else 8
        if c.kind == "mfma":
            if pv & set(c.ab): n = max(n, big)
            if pv & set(c.srcc):
                if not (p.wr == c.srcc and p.passes == c.passes):
                    n = max(n, 10 if p.passes == 8 else 6)
            elif pv & cw:
                n = max(n, 10 if p.passes == 8 else 6)
        elif c.kind in ("valu", "ds", "vmem"):
            if pv & (cr | cw): n = max(n, big)
        if c.kind == "valu" and set(p.srcc) & cw: n = max(n, 7 if p.passes == 8 else 3)
    if p.kind == "vmem" and p.wide:
        if set(p.data) & cw: n = max(n, 2 if c.kind in ("valu", "mfma") else 1)
    if p.kind == "salu" and ("s", "m0") in pw and ("s", "m0") in cr and c.kind in ("vmem", "ds"):
        n = max(n, 1)
    return n

MAXD = 14

class Asm:
    def __init__(self):
        self.lines = []

    def __call__(self, text):
        for ln in text.split("\n"):
            s = ln.strip()
            if not s:
                continue
            if s.startswith(";"):
                self.lines.append("    " + s)
            elif s.endswith(":") or s.startswith("."):
                self.lines.append(s)
            else:
                self.lines.append(Ins(s))

    def label(self, name):
        self.lines.append(name + ":")

    def raw(self, s):
        self.lines.append(s)

    def finish(self):
        L = self.lines
        changed = True
        it = 0
        while changed:
            changed = False
            it += 1
            assert it < 50
            labels = {}
            for i, x in enumerate(L):
                if isinstance(x, str) and x.endswith(":"):
                    labels[x[:-1]] = i
            branches = {}
            for i, x in enumerate(L):
                if isinstance(x, Ins) and x.op.startswith(("s_branch", "s_cbranch")):
                    branches.setdefault(x.ops[0], []).append(i)

            def back(i, dist, c, seen):
                worst = 0
                j = i - 1
                while j >= 0 and dist < MAXD:
                    x = L[j]
                    if isinstance(x, str):
                        if x.endswith(":"):
                            for b in branches.get(x[:-1], []):
                                key = (b, dist)
                                if key in seen:
                                    continue
                                seen.add(key)
                                worst = max(worst, need(L[b], c) - dist, back(b, dist + 1, c, seen))
                        j -= 1
                        continue
                    if x.op in ("s_branch", "s_endpgm", "s_setpc_b64"):
                        break
                    worst = max(worst, need(x, c) - dist)
                    dist += x.states()
                    j -= 1
                return worst

            out = []
            for i, x in enumerate(L):
                if isinstance(x, Ins):
                    w = back(i, 0, x, set())
                    if w > 0:
                        out.append((i, w))
            if out:
                changed = True
                newL = []
                k = 0
                last_ins = -100
                pend = dict(out)
                for i, x in enumerate(L):
                    if i in pend and i - last_ins > MAXD + 4:
                        newL.append(Ins("s_nop %d" % (pend[i] - 1)))
                        last_ins = i
                    newL.append(x)
                L = newL
                it = 0 if len(out) else it
        self.lines = L
        return "\n".join(("    " + x.text) if isinstance(x, Ins) else x for x in L) + "\n"

    def count_nops(self):
        return sum(x.states() for x in self.lines if isinstance(x, Ins) and x.op == "s_nop")
```

```python
import sys, math
sys.path.insert(0, "work")
from asmlib import Asm, fhex, f2u

NAME = "interleave_layers__spectral_gfnet__softmax_full_mha__prompt"
MB = 1 << 20
WS_X0, WS_X1, WS_X2, WS_X3 = 0 * MB, 2 * MB, 4 * MB, 6 * MB
WS_Y1, WS_YS = 8 * MB, 10 * MB
WS_Q1, WS_K1, WS_V1 = 12 * MB, 14 * MB, 16 * MB
WS_Q2, WS_K2, WS_V2 = 18 * MB, 20 * MB, 22 * MB
WS_O1, WS_OS = 24 * MB, 26 * MB
WS_WT = 28 * MB
WS_WQ = 30 * MB
WS_WQT = 32 * MB
WS_WO2 = 34 * MB
WS_FA = 34 * MB + 512 * 1024
WS_FT = 35 * MB
WS_SSQ0 = 36 * MB
WS_SSQ2 = 36 * MB + 8192
WS_SIZE = 37 * MB

M32 = "v_mfma_f32_32x32x16_bf16"
M16 = "v_mfma_f32_16x16x32_bf16"
def vr(a, n): return f"v[{a}:{a+n-1}]"

kernels = []
A = Asm()

def srd(a, sreg, lo, hi, size):
    a(f"s_mov_b32 s{sreg}, s{lo}\ns_and_b32 s{sreg+1}, s{hi}, 0xffff\ns_mov_b32 s{sreg+2}, {size}\ns_mov_b32 s{sreg+3}, 0x20000")

def entry(a, label):
    a.raw(f".globl {label}\n.p2align 8\n.type {label},@function")
    a.label(label)

def prologue(a, nwg, done):
    a(f"""
    s_cmp_ge_u32 s2, {nwg}
    s_cbranch_scc1 {done}
    s_load_dwordx2 s[4:5], s[0:1], 64
    v_and_b32 v1, 63, v0
    v_lshrrev_b32 v2, 6, v0
    v_readfirstlane_b32 s20, v2
    """)

def ws_srd(a):
    a("s_waitcnt lgkmcnt(0)")
    srd(a, 8, 4, 5, WS_SIZE)

def slot_params(a, vslot, vdl, vph, vt, vsg=None):
    a(f"""
    v_lshrrev_b32 v{vt}, 1, v{vslot}
    v_cvt_f32_u32 v{vdl}, v{vt}
    v_mul_f32 v{vdl}, {fhex(1/512)}, v{vdl}
    v_and_b32 v{vph}, 1, v{vslot}
    v_cvt_f32_u32 v{vph}, v{vph}
    v_mul_f32 v{vph}, {fhex(0.25)}, v{vph}
    v_cmp_eq_u32 vcc, 0, v{vt}
    v_cndmask_b32 v{vdl}, v{vdl}, 0.5, vcc
    """)
    if vsg is not None:
        a(f"""
        v_and_b32 v{vsg}, 1, v{vt}
        v_sub_u32 v{vsg}, 0, v{vsg}
        v_and_b32 v{vsg}, 0x80008000, v{vsg}
        """)
    a(f"""
    v_mov_b32 v{vt}, {fhex(1/6)}
    v_cndmask_b32 v{vph}, v{vph}, v{vt}, vcc
    """)

def gen_k1(a):
    L = "k1_kernel"
    entry(a, L)
    prologue(a, 512, "k1_done")
    a("""
    s_load_dwordx4 s[24:27], s[0:1], 0
    s_load_dwordx2 s[28:29], s[0:1], 16
    s_load_dwordx4 s[32:35], s[0:1], 32
    """)
    ws_srd(a)
    a("""
    v_and_b32 v3, 31, v1
    v_lshrrev_b32 v4, 5, v1
    s_cmp_ge_u32 s2, 256
    s_cbranch_scc1 k1_jobs
    """)
    srd(a, 12, 24, 25, 2 * MB)
    a("""
    s_and_b32 s21, s2, 7
    s_lshr_b32 s22, s2, 3
    s_lshl_b32 s21, s21, 2
    s_and_b32 s23, s22, 3
    s_add_u32 s21, s21, s23          ; tt
    s_lshr_b32 s22, s22, 2           ; st
    v_lshlrev_b32 v5, 4, v1          ; lane*16
    s_lshl_b32 s36, s20, 19
    s_lshl_b32 s37, s21, 10
    s_add_u32 s36, s36, s37
    s_mul_i32 s37, s20, 16640
    """)
    for r in range(16):
        a(f"""
        s_add_u32 m0, s37, {r*1040}
        s_add_u32 s38, s36, {r*32768}
        buffer_load_dwordx4 v5, s[12:15], s38 offen lds
        """)
    a("""
    s_lshr_b32 s39, s20, 1           ; ws
    s_and_b32 s40, s20, 1            ; wt
    s_lshl_b32 s41, s22, 1
    s_add_u32 s41, s41, s39
    s_lshl_b32 s42, s41, 5
    v_add_u32 v6, s42, v3            ; slot
    """)
    slot_params(a, 6, 7, 8, 9, 10)
    a("""
    v_cvt_f32_u32 v9, v4
    v_mul_f32 v9, 8.0, v9
    v_fmac_f32 v8, v9, v7            ; phi' = phi + 8h*delta
    """.replace("8.0", fhex(8.0)))
    FB = 32
    T = 16
    for ks in range(16):
        for i in range(8):
            a(f"v_fmamk_f32 v{T+i}, v7, {fhex(16*ks+i)}, v8")
        for i in range(8):
            a(f"v_cos_f32 v{T+i}, v{T+i}")
        for i in range(4):
            a(f"v_cvt_pk_bf16_f32 v{FB+4*ks+i}, v{T+2*i}, v{T+2*i+1}")
    a("""
    s_lshl_b32 s42, s40, 5
    v_add_u32 v11, s42, v3           ; a
    v_mul_u32_u24 v12, 1040, v11
    v_lshl_add_u32 v12, v4, 4, v12
    s_waitcnt vmcnt(0)
    s_barrier
    """)
    XB = 112
    ACC = 96
    for ks in range(32):
        a(f"ds_read_b128 {vr(XB+4*ks,4)}, v12 offset:{32*ks}")
        if ks >= 12:
            pass
    for ks in range(16):
        a(f"s_waitcnt lgkmcnt({min(15, 31-ks)})")
        a(f"{M32} {vr(ACC,16)}, {vr(FB+4*ks,4)}, {vr(XB+4*ks,4)}, " + ("0" if ks == 0 else vr(ACC,16)))
        for i in range(4):
            pass
    for ks in range(16):
        for i in range(4):
            a(f"v_xor_b32 v{FB+4*ks+i}, v10, v{FB+4*ks+i}")
    for ks in range(16):
        a(f"s_waitcnt lgkmcnt({15-ks})")
        a(f"{M32} {vr(ACC,16)}, {vr(FB+4*ks,4)}, {vr(XB+64+4*ks,4)}, {vr(ACC,16)}")
    a("""
    s_lshl_b32 s42, s41, 17
    s_lshl_b32 s43, s21, 8
    s_add_u32 s42, s42, s43
    v_lshlrev_b32 v13, 14, v4
    v_lshl_add_u32 v13, v11, 2, v13
    v_add_u32 v13, s42, v13
    """)
    for r in range(16):
        a(f"v_mul_f32 v{ACC+r}, {fhex(1/16)}, v{ACC+r}")
    for r in range(0, 16, 2):
        c = (((r & 3) >> 1) + 4 * (r >> 2)) * 8192
        a(f"""
        v_cvt_pk_bf16_f32 v{T+r//2}, v{ACC+r}, v{ACC+r+1}
        s_mov_b32 s44, {WS_X0 + c}
        buffer_store_dword v{T+r//2}, v13, s[8:11], s44 offen
        """)
    a("s_endpgm")

    a.label("k1_jobs")
    a("""
    s_sub_u32 s21, s2, 256
    s_cmp_lt_u32 s21, 64
    s_cbranch_scc1 k1_wt
    s_sub_u32 s21, s21, 64
    s_cmp_lt_u32 s21, 32
    s_cbranch_scc1 k1_stats
    s_sub_u32 s21, s21, 32
    s_cmp_lt_u32 s21, 96
    s_cbranch_scc1 k1_wqt
    s_sub_u32 s21, s21, 96
    s_cmp_lt_u32 s21, 32
    s_cbranch_scc1 k1_ftwo
    s_sub_u32 s21, s21, 32
    s_cmp_lt_u32 s21, 16
    s_cbranch_scc1 k1_fa
    s_sub_u32 s21, s21, 16
    """)
    a("""
    v_lshrrev_b32 v5, 2, v3
    v_and_b32 v5, 1, v5
    v_lshlrev_b32 v5, 4, v5          ; 16*((i>>2)&1)
    v_and_b32 v6, 3, v3
    v_add_u32 v5, v5, v6
    v_lshrrev_b32 v6, 3, v3
    v_lshl_add_u32 v5, v6, 2, v5     ; perm(i)
    s_lshl_b32 s22, s21, 5
    v_add_u32 v5, s22, v5            ; c
    v_cvt_f32_u32 v7, v5
    """)
    a(f"v_mul_f32 v7, {fhex(1/512)}, v7     ; gamma")
    a("""
    s_lshl_b32 s22, s20, 6           ; 64q
    v_lshl_add_u32 v8, v4, 2, s22    ; 64q + 4h
    v_cvt_f32_u32 v8, v8
    v_mul_f32 v8, v8, v7
    s_lshl_b32 s22, s21, 16
    s_lshl_b32 s23, s20, 13
    s_add_u32 s22, s22, s23
    v_lshlrev_b32 v9, 4, v1
    v_add_u32 v9, s22, v9
    """)
    a(f"s_mov_b32 s24, {WS_FT}\ns_mov_b32 s25, {WS_FT+4096}")
    a("""
    v_and_b32 v10, 1, v5
    v_sub_u32 v10, 0, v10
    v_and_b32 v10, 0x80008000, v10
    v_or_b32 v10, 0x3d003d00, v10
    v_or_b32 v11, s20, v4
    v_cmp_eq_u32 vcc, 0, v11
    """)
    for f in range(8):
        R = 32 + 4 * f
        for i in range(4):
            a(f"v_fmamk_f32 v16, v7, {fhex(8*f+i)}, v8\nv_cos_f32 v17, v16\nv_sin_f32 v18, v16")
            a(f"v_mul_f32 v17, {fhex(1/16)}, v17\nv_mul_f32 v18, {fhex(-1/16)}, v18\nv_cvt_pk_bf16_f32 v{R+i}, v17, v18")
        if f == 0:
            a(f"v_cndmask_b32 v{R}, v{R}, v10, vcc")
        a(f"buffer_store_dwordx4 {vr(R,4)}, v9, s[8:11], s{24+f//4} offen offset:{(f%4)*1024}")
    a("s_endpgm")

    a.label("k1_fa")
    a("""
    s_lshl_b32 s22, s21, 5
    v_add_u32 v6, s22, v3
    """)
    slot_params(a, 6, 7, 8, 9)
    a("""
    s_lshl_b32 s22, s20, 7           ; 128q
    v_lshl_add_u32 v9, v4, 3, s22    ; 128q + 8h
    v_cvt_f32_u32 v9, v9
    v_fmac_f32 v8, v9, v7
    s_lshl_b32 s22, s21, 15
    s_lshl_b32 s23, s20, 13
    s_add_u32 s22, s22, s23
    v_lshlrev_b32 v9, 4, v1
    v_add_u32 v9, s22, v9
    """)
    a(f"s_mov_b32 s24, {WS_FA}\ns_mov_b32 s25, {WS_FA+4096}")
    for f in range(8):
        R = 32 + 4 * f
        for i in range(8):
            a(f"v_fmamk_f32 v{16+i}, v7, {fhex(16*f+i)}, v8")
        for i in range(8):
            a(f"v_cos_f32 v{16+i}, v{16+i}")
        for i in range(8):
            a(f"v_mul_f32 v{16+i}, {fhex(1/16)}, v{16+i}")
        for i in range(4):
            a(f"v_cvt_pk_bf16_f32 v{R+i}, v{16+2*i}, v{17+2*i}")
        a(f"buffer_store_dwordx4 {vr(R,4)}, v9, s[8:11], s{24+f//4} offen offset:{(f%4)*1024}")
    a("s_endpgm")

    a.label("k1_ftwo")
    srd(a, 12, 34, 35, 512 * 1024)
    a("""
    s_lshl_b32 s22, s21, 2
    s_add_u32 s22, s22, s20
    s_lshr_b32 s23, s22, 3           ; ct
    s_and_b32 s22, s22, 7            ; q
    v_lshrrev_b32 v5, 2, v3
    v_and_b32 v5, 1, v5
    v_lshlrev_b32 v5, 4, v5
    v_and_b32 v6, 3, v3
    v_add_u32 v5, v5, v6
    v_lshrrev_b32 v6, 3, v3
    v_lshl_add_u32 v5, v6, 2, v5     ; perm(i)
    v_lshlrev_b32 v5, 1, v5
    v_lshl_add_u32 v5, v4, 12, v5    ; + 4h*1024
    s_lshl_b32 s24, s23, 6
    s_lshl_b32 s25, s22, 16
    s_add_u32 s24, s24, s25
    v_add_u32 v5, s24, v5
    """)
    for f in range(4):
        for jj in range(8):
            if jj % 4 == 0:
                a(f"s_mov_b32 s26, {f*16384 + (jj>>2)*8192}")
            a(f"buffer_load_ushort v{32+8*f+jj}, v5, s[12:15], s26 offen offset:{(jj&3)*1024}")
    a(f"""
    s_lshl_b32 s24, s23, 16
    s_lshl_b32 s25, s22, 12
    s_add_u32 s24, s24, s25
    s_add_u32 s24, s24, {WS_FT + 32*1024}
    v_lshlrev_b32 v9, 4, v1
    """)
    for f in range(4):
        a(f"s_waitcnt vmcnt({24-8*f+f})")
        for i in range(4):
            a(f"v_lshl_or_b32 v{64+4*f+i}, v{32+8*f+2*i+1}, 16, v{32+8*f+2*i}")
        a(f"buffer_store_dwordx4 {vr(64+4*f,4)}, v9, s[8:11], s24 offen offset:{f*1024}")
    a("s_endpgm")

    a.label("k1_wqt")
    srd(a, 12, 32, 33, 512 * 3072)
    a("""
    s_lshl_b32 s22, s21, 2
    s_add_u32 s22, s22, s20
    s_lshr_b32 s23, s22, 3           ; ct
    s_and_b32 s22, s22, 7            ; q
    v_mul_u32_u24 v5, 24576, v4      ; 8h*3072
    v_lshl_add_u32 v5, v3, 1, v5
    s_lshl_b32 s24, s23, 6
    s_mul_i32 s25, s22, 196608       ; 64q*3072
    s_add_u32 s24, s24, s25
    v_add_u32 v5, s24, v5
    """)
    for f in range(4):
        for i in range(8):
            if i % 2 == 0:
                a(f"s_mov_b32 s26, {(16*f+i)*3072}")
            a(f"buffer_load_ushort v{32+8*f+i}, v5, s[12:15], s26 offen offset:{(i&1)*3072}")
    a(f"""
    s_lshl_b32 s24, s23, 15
    s_lshl_b32 s25, s22, 12
    s_add_u32 s24, s24, s25
    s_add_u32 s24, s24, {WS_WQT}
    v_lshlrev_b32 v9, 4, v1
    """)
    for f in range(4):
        a(f"s_waitcnt vmcnt({24-8*f+f})")
        for i in range(4):
            a(f"v_lshl_or_b32 v{64+4*f+i}, v{32+8*f+2*i+1}, 16, v{32+8*f+2*i}")
        a(f"buffer_store_dwordx4 {vr(64+4*f,4)}, v9, s[8:11], s24 offen offset:{f*1024}")
    a("s_endpgm")

    a.label("k1_stats")
    srd(a, 12, 24, 25, 2 * MB)
    a("""
    s_lshl_b32 s22, s21, 2
    s_add_u32 s22, s22, s20          ; u
    v_lshrrev_b32 v5, 3, v1          ; row8
    v_and_b32 v6, 7, v1              ; q
    v_lshlrev_b32 v7, 10, v5
    v_lshl_add_u32 v7, v6, 4, v7
    s_lshl_b32 s23, s22, 14
    s_add_u32 s24, s23, 8192
    """)
    for ps in range(2):
        for i in range(8):
            a(f"buffer_load_dwordx4 {vr(32+32*ps+4*i,4)}, v7, s[12:15], s{23+ps} offen offset:{128*i}")
    a("""
    v_mov_b32 v8, 0x3f803f80
    v_mov_b32 v10, 0
    v_mov_b32 v11, 0
    v_mov_b32 v12, 0
    v_mov_b32 v13, 0
    """)
    for ps in range(2):
        a(f"s_waitcnt vmcnt({8-8*ps})")
        for i in range(32):
            a(f"v_dot2_f32_bf16 v{10+2*ps}, v{32+32*ps+i}, v{32+32*ps+i}, v{10+2*ps}")
            a(f"v_dot2_f32_bf16 v{11+2*ps}, v{32+32*ps+i}, v8, v{11+2*ps}")
    for ctl in ("quad_perm:[1,0,3,2]", "quad_perm:[2,3,0,1]", "row_half_mirror"):
        for r in range(10, 14):
            a(f"v_add_f32_dpp v{r}, v{r}, v{r} {ctl} row_mask:0xf bank_mask:0xf")
    a(f"""
    v_mul_f32 v11, v11, v11
    v_mul_f32 v13, v13, v13
    v_fmac_f32 v10, {fhex(-1/512)}, v11
    v_fmac_f32 v12, {fhex(-1/512)}, v13
    v_max_f32 v10, 0, v10
    v_max_f32 v12, 0, v12
    s_lshl_b32 s23, s22, 4
    v_add_u32 v14, s23, v5
    v_and_b32 v15, 31, v14
    v_lshlrev_b32 v15, 6, v15
    v_lshrrev_b32 v14, 5, v14
    v_add_u32 v15, v15, v14
    v_lshlrev_b32 v15, 2, v15
    v_mov_b32 v16, 0
    v_cmp_eq_u32 vcc, 0, v6
    s_mov_b32 s24, {WS_SSQ0}
    s_mov_b32 s25, {WS_SSQ2}
    s_and_saveexec_b64 s[26:27], vcc
    buffer_store_dword v10, v15, s[8:11], s24 offen
    buffer_store_dword v12, v15, s[8:11], s24 offen offset:2048
    buffer_store_dword v16, v15, s[8:11], s25 offen
    buffer_store_dword v16, v15, s[8:11], s25 offen offset:2048
    s_endpgm
    """)

    a.label("k1_wt")
    srd(a, 12, 26, 27, 2048 * 514)
    srd(a, 16, 28, 29, 2048 * 514)
    a("""
    s_and_b32 s22, s21, 7            ; cq
    s_lshr_b32 s23, s21, 3           ; eq
    s_lshl_b32 s24, s23, 2
    s_add_u32 s24, s24, s20
    s_lshl_b32 s24, s24, 3
    s_add_u32 s24, s24, s22
    s_mul_i32 s24, s24, 4112
    s_add_u32 s25, s24, 4096
    v_lshlrev_b32 v5, 4, v1
    s_mul_i32 s30, s20, 10240
    """)
    for arr in range(2):
        S = 12 + 4 * arr
        a(f"s_add_u32 m0, s30, {arr*5120}")
        for i in range(4):
            a(f"buffer_load_dwordx4 v5, s[{S}:{S+3}], s24 offen offset:{1024*i} lds")
        a(f"s_add_u32 m0, s30, {arr*5120+4096}")
        a(f"buffer_load_dwordx4 v5, s[{S}:{S+3}], s25 offen lds")
    a("""
    v_lshrrev_b32 v6, 3, v1
    v_and_b32 v7, 7, v1
    s_lshl_b32 s31, s20, 6
    v_add_u32 v8, s31, v6
    v_mul_u32_u24 v9, 514, v7
    v_lshl_add_u32 v10, v8, 1, v9
    v_cmp_eq_u32 vcc, 0, v8
    v_add_u32 v11, 512, v9
    v_cndmask_b32 v11, v10, v11, vcc
    s_lshr_b32 s32, s22, 1
    s_lshl_b32 s32, s32, 11
    s_and_b32 s33, s22, 1
    s_lshl_b32 s33, s33, 7
    s_add_u32 s32, s32, s33
    s_lshl_b32 s33, s23, 8           ; eq*256 = t*1024 + g*256
    s_add_u32 s32, s32, s33
    v_lshlrev_b32 v12, 13, v8
    v_lshl_add_u32 v12, v7, 4, v12
    v_add_u32 v12, s32, v12
    s_waitcnt vmcnt(0)
    s_barrier
    """)
    for it in range(8):
        R = 32 + 8 * it
        for r in range(4):
            ad = "v11" if it == 0 else "v10"
            a(f"ds_read_u16 v{R+2*r}, {ad} offset:{r*10240 + 16*it}")
            a(f"ds_read_u16 v{R+2*r+1}, {ad} offset:{r*10240 + 5120 + 16*it}")
        a("s_waitcnt lgkmcnt(0)")
        for r in range(4):
            a(f"v_lshl_or_b32 v{96+4*it+r}, v{R+2*r+1}, 16, v{R+2*r}")
        a(f"s_mov_b32 s34, {WS_WT + it*65536}")
        a(f"buffer_store_dwordx4 {vr(96+4*it,4)}, v12, s[8:11], s34 offen")
    a.label("k1_done")
    a("s_endpgm")
    kernels.append((L, 240, 64))

def gen_k2(a):
    entry(a, "k2a_kernel")
    a(f"""
    s_mov_b32 s44, {WS_X0}
    s_mov_b32 s45, {WS_X1}
    s_mov_b32 s46, {WS_SSQ0}
    s_mov_b32 s47, {WS_Y1}
    s_mov_b32 s48, 0
    s_mov_b32 s49, 512
    s_branch k2_body
    """)
    entry(a, "k2b_kernel")
    a(f"""
    s_mov_b32 s44, {WS_X2}
    s_mov_b32 s45, {WS_X3}
    s_mov_b32 s46, {WS_SSQ2}
    s_mov_b32 s47, {WS_YS}
    s_mov_b32 s48, 1
    s_mov_b32 s49, 256
    """)
    a.label("k2_body")
    prologue(a, "s49", "k2_done")
    a("s_load_dwordx2 s[34:35], s[0:1], 40")
    ws_srd(a)
    a("""
    s_cmp_ge_u32 s2, 256
    s_cbranch_scc1 k2_g
    """)
    X = 8
    SQ = 16
    W = 24
    RES = 32
    YP = 40
    B1R, B1I = 48, 64
    A2R, A2I = 80, 96
    TW1 = 112
    TW2 = 128
    U = 144
    D = 176
    P = 192
    T = 200
    a("""
    s_lshl_b32 s21, s2, 13           ; j*8192
    v_lshlrev_b32 v3, 4, v0          ; t*16
    s_add_u32 s22, s44, s21
    s_add_u32 s23, s22, 4096
    s_add_u32 s24, s46, 4096
    """)
    a(f"""
    buffer_load_dwordx4 {vr(X,4)}, v3, s[8:11], s22 offen
    buffer_load_dwordx4 {vr(X+4,4)}, v3, s[8:11], s23 offen
    buffer_load_dwordx4 {vr(SQ,4)}, v3, s[8:11], s46 offen
    buffer_load_dwordx4 {vr(SQ+4,4)}, v3, s[8:11], s24 offen
    v_and_b32 v4, 15, v1             ; c16
    v_lshrrev_b32 v5, 4, v1          ; g
    s_lshl_b32 s25, s20, 11
    s_add_u32 s25, s25, s21
    s_add_u32 s25, s25, {WS_WT}
    v_lshlrev_b32 v6, 4, v1
    buffer_load_dwordx4 {vr(W,4)}, v6, s[8:11], s25 offen
    buffer_load_dwordx4 {vr(W+4,4)}, v6, s[8:11], s25 offen offset:1024
    s_lshl_b32 s26, s20, 4
    v_add_u32 v7, s26, v4            ; cw = 16w + c16
    v_lshlrev_b32 v2, 10, v5
    v_lshl_add_u32 v2, v7, 2, v2     ; 1024g + 4a
    """)
    for bt in range(2):
        for r in range(4):
            a(f"buffer_load_dword v{RES+4*bt+r}, v2, s[8:11], s{22+bt} offen offset:{256*r}")
    a(f"""
    s_add_u32 s26, s21, {WS_Y1}
    s_add_u32 s27, s26, 4096
    """)
    for bt in range(2):
        for r in range(4):
            a(f"buffer_load_dword v{YP+4*bt+r}, v2, s[8:11], s{26+bt} offen offset:{256*r}")
    a(f"""
    v_cvt_f32_u32 v{T}, v7
    v_mul_f32 v{T}, {fhex(-1/64)}, v{T}       ; -c/64
    v_cvt_f32_u32 v{T+1}, v5
    v_mul_f32 v{T+1}, 4.0, v{T+1}             ; 4g
    v_mul_f32 v{T+2}, v{T+1}, v{T}            ; base
    """)
    for ks in range(4):
        for r in range(4):
            a(f"""
            v_fmamk_f32 v{T+4}, v{T}, {fhex(16*ks+r)}, v{T+2}
            v_cos_f32 v{T+5}, v{T+4}
            v_sin_f32 v{T+6}, v{T+4}
            v_cvt_pk_bf16_f32 v{B1R+4*ks+r}, v{T+5}, -v{T+6}
            v_cvt_pk_bf16_f32 v{B1I+4*ks+r}, v{T+6}, v{T+5}
            """)
    a(f"""
    v_lshrrev_b32 v{T+4}, 4, v0
    v_mul_u32_u24 v{T+4}, 272, v{T+4}
    v_and_b32 v{T+5}, 15, v0
    v_lshl_add_u32 v{T+4}, v{T+5}, 4, v{T+4}
    v_mov_b32 v{T+5}, {fhex(1e-5)}
    s_waitcnt vmcnt(18)
    """)
    for i in range(8):
        a(f"v_fmamk_f32 v{SQ+i}, v{SQ+i}, {fhex(1/512)}, v{T+5}")
    for i in range(8):
        a(f"v_rsq_f32 v{SQ+i}, v{SQ+i}")
    for i in range(8):
        a(f"""
        v_lshlrev_b32 v{T+6}, 16, v{X+i}
        v_and_b32 v{T+7}, 0xffff0000, v{X+i}
        v_mul_f32 v{T+6}, v{T+6}, v{SQ+i}
        v_mul_f32 v{T+7}, v{T+7}, v{SQ+i}
        v_cvt_pk_bf16_f32 v{X+i}, v{T+6}, v{T+7}
        """)
    a(f"""
    ds_write_b128 v{T+4}, {vr(X,4)}
    ds_write_b128 v{T+4}, {vr(X+4,4)} offset:{16*272}
    v_mul_u32_u24 v{T+8}, 272, v4
    v_lshl_add_u32 v{T+8}, v5, 4, v{T+8}      ; 272*c16 + 16g
    s_waitcnt lgkmcnt(0)
    s_barrier
    """)
    for mt in range(2):
        for ks in range(4):
            a(f"ds_read_b128 {vr(U+16*mt+4*ks,4)}, v{T+8} offset:{mt*16*272 + 64*ks}")
    for et in range(2):
        a(f"""
        v_add_u32 v{T+3}, {16*et}, v4
        v_cvt_f32_u32 v{T+3}, v{T+3}
        v_mul_f32 v{T+3}, {fhex(-1/32)}, v{T+3}
        v_mul_f32 v{T+9}, v{T+1}, v{T+3}
        """)
        for ks in range(2):
            for r in range(4):
                a(f"""
                v_fmamk_f32 v{T+4}, v{T+3}, {fhex(16*ks+r)}, v{T+9}
                v_cos_f32 v{T+5}, v{T+4}
                v_sin_f32 v{T+6}, v{T+4}
                v_cvt_pk_bf16_f32 v{A2R+8*et+4*ks+r}, v{T+5}, -v{T+6}
                v_cvt_pk_bf16_f32 v{A2I+8*et+4*ks+r}, v{T+6}, v{T+5}
                """)
    a("s_waitcnt lgkmcnt(0)")
    for ks in range(4):
        for mt in range(2):
            for comp in range(2):
                d = D + 8 * mt + 4 * comp
                b = (B1R, B1I)[comp] + 4 * ks
                a(f"{M16} {vr(d,4)}, {vr(U+16*mt+4*ks,4)}, {vr(b,4)}, " + ("0" if ks == 0 else vr(d,4)))
    a(f"""
    v_mul_f32 v{T+3}, {fhex(1/32)}, v{T}       ; -c/2048
    v_mul_f32 v{T+9}, v{T+1}, v{T+3}
    """)
    for mt in range(2):
        for r in range(4):
            a(f"""
            v_fmamk_f32 v{T+4}, v{T+3}, {fhex(16*mt+r)}, v{T+9}
            v_cos_f32 v{TW1+4*mt+r}, v{T+4}
            v_sin_f32 v{TW1+8+4*mt+r}, v{T+4}
            """)
    a(f"""
    s_lshl_b32 s28, s20, 4
    v_lshl_add_u32 v{T+10}, v5, 2, s28
    v_cvt_f32_u32 v{T+10}, v{T+10}            ; 16w+4g
    """)
    for bt in range(2):
        a(f"""
        v_add_u32 v{T+3}, {16*bt}, v4
        v_cvt_f32_u32 v{T+3}, v{T+3}
        v_mul_f32 v{T+3}, {fhex(1/2048)}, v{T+3}
        v_mul_f32 v{T+9}, v{T+10}, v{T+3}
        """)
        for r in range(4):
            a(f"""
            v_fmamk_f32 v{T+4}, v{T+3}, {fhex(r)}, v{T+9}
            v_cos_f32 v{TW2+4*bt+r}, v{T+4}
            v_sin_f32 v{TW2+8+4*bt+r}, v{T+4}
            v_mul_f32 v{TW2+4*bt+r}, {fhex(1/2048)}, v{TW2+4*bt+r}
            v_mul_f32 v{TW2+8+4*bt+r}, {fhex(1/2048)}, v{TW2+8+4*bt+r}
            """)
    def cmul_pack(re, im, cr, ci, dst, swap):
        a(f"""
        v_mul_f32 v{T+4}, v{im}, v{ci}
        v_mul_f32 v{T+5}, v{re}, v{ci}
        v_fma_f32 v{T+4}, v{re}, v{cr}, -v{T+4}
        v_fmac_f32 v{T+5}, v{im}, v{cr}
        """)
        if swap:
            a(f"v_cvt_pk_bf16_f32 v{dst}, v{T+5}, v{T+4}")
        else:
            a(f"v_cvt_pk_bf16_f32 v{dst}, v{T+4}, v{T+5}")
    for mt in range(2):
        for r in range(4):
            cmul_pack(D+8*mt+r, D+8*mt+4+r, TW1+4*mt+r, TW1+8+4*mt+r, P+4*mt+r, False)
    for ks in range(2):
        for et in range(2):
            for comp in range(2):
                d = D + 8 * et + 4 * comp
                aa = (A2R, A2I)[comp] + 8 * et + 4 * ks
                a(f"{M16} {vr(d,4)}, {vr(aa,4)}, {vr(P+4*ks,4)}, " + ("0" if ks == 0 else vr(d,4)))
    a("s_waitcnt vmcnt(16)")
    for et in range(2):
        for r in range(4):
            a(f"""
            v_lshlrev_b32 v{T+6}, 16, v{W+4*et+r}
            v_and_b32 v{T+7}, 0xffff0000, v{W+4*et+r}
            """)
            cmul_pack(D+8*et+r, D+8*et+4+r, T+6, T+7, P+4*et+r, True)
    for ks in range(2):
        for bt in range(2):
            for comp in range(2):
                d = D + 8 * bt + 4 * comp
                bb = (A2I, A2R)[comp] + 8 * bt + 4 * ks
                a(f"{M16} {vr(d,4)}, {vr(P+4*ks,4)}, {vr(bb,4)}, " + ("0" if ks == 0 else vr(d,4)))
    for bt in range(2):
        for r in range(4):
            cmul_pack(D+8*bt+r, D+8*bt+4+r, TW2+4*bt+r, TW2+8+4*bt+r, P+4*bt+r, True)
    RB = 8704 + 0
    a(f"""
    s_lshl_b32 s28, s20, 10
    v_add_u32 v{T+8}, s28, v6
    ds_write_b128 v{T+8}, {vr(P,4)} offset:{RB}
    ds_write_b128 v{T+8}, {vr(P+4,4)} offset:{RB+4096}
    s_waitcnt lgkmcnt(0)
    s_barrier
    """)
    for bt in range(2):
        for ks in range(4):
            a(f"ds_read_b128 {vr(U+16*bt+4*ks,4)}, v6 offset:{RB + 4096*bt + 1024*ks}")
    a("s_waitcnt lgkmcnt(0)")
    for ks in range(4):
        for bt in range(2):
            for comp in range(2):
                d = D + 8 * bt + 4 * comp
                bb = (B1I, B1R)[comp] + 4 * ks
                a(f"{M16} {vr(d,4)}, {vr(U+16*bt+4*ks,4)}, {vr(bb,4)}, " + ("0" if ks == 0 else vr(d,4)))
    a("""
    s_cmp_lg_u32 s2, 0
    s_cbranch_scc1 k2_nofix
    """)
    for bt in range(2):
        for r in range(4):
            a(f"""
            v_add_f32 v{D+8*bt+r}, v{D+8*bt+r}, v{D+8*bt+4+r}
            v_mul_f32 v{D+8*bt+r}, 0.5, v{D+8*bt+r}
            v_mov_b32 v{D+8*bt+4+r}, v{D+8*bt+r}
            """)
    a.label("k2_nofix")
    a(f"""
    s_add_u32 s22, s45, s21
    s_add_u32 s23, s22, 4096
    s_add_u32 s26, s47, s21
    s_add_u32 s27, s26, 4096
    s_sub_u32 s29, 0, s48            ; mask 0 / -1
    s_waitcnt vmcnt(0)
    """)
    for bt in range(2):
        for r in range(4):
            i = 4 * bt + r
            a(f"""
            v_lshlrev_b32 v{T+4}, 16, v{RES+i}
            v_and_b32 v{T+5}, 0xffff0000, v{RES+i}
            v_add_f32 v{T+4}, v{T+4}, v{D+8*bt+r}
            v_add_f32 v{T+5}, v{T+5}, v{D+8*bt+4+r}
            v_cvt_pk_bf16_f32 v{RES+i}, v{T+4}, v{T+5}
            buffer_store_dword v{RES+i}, v2, s[8:11], s{22+bt} offen offset:{256*r}
            v_and_b32 v{YP+i}, s29, v{YP+i}
            v_lshlrev_b32 v{T+6}, 16, v{YP+i}
            v_and_b32 v{T+7}, 0xffff0000, v{YP+i}
            v_add_f32 v{T+6}, v{T+6}, v{D+8*bt+r}
            v_add_f32 v{T+7}, v{T+7}, v{D+8*bt+4+r}
            v_cvt_pk_bf16_f32 v{YP+i}, v{T+6}, v{T+7}
            buffer_store_dword v{YP+i}, v2, s[8:11], s{26+bt} offen offset:{256*r}
            """)
    a("s_endpgm")

    a.label("k2_g")
    a(f"""
    s_sub_u32 s21, s2, 256
    s_and_b32 s22, s20, 1            ; wi
    s_lshr_b32 s23, s20, 1           ; wn
    s_and_b32 s24, s21, 7
    s_lshl_b32 s24, s24, 1
    s_add_u32 s24, s24, s22
    s_lshr_b32 s25, s21, 3
    v_lshlrev_b32 v3, 4, v1
    s_cmp_ge_u32 s21, 192
    s_cbranch_scc1 k2_g_wo
    s_lshl_b32 s25, s25, 1
    s_add_u32 s25, s25, s23          ; ct (48)
    s_mov_b32 s12, s8
    s_mov_b32 s13, s9
    s_mov_b32 s14, s10
    s_mov_b32 s15, 0x20000
    v_mov_b32 v4, v3
    s_lshl_b32 s26, s24, 15
    s_add_u32 s26, s26, {WS_FA}
    s_movk_i32 s27, 1024
    s_lshl_b32 s28, s25, 15
    s_add_u32 s28, s28, {WS_WQT}
    s_and_b32 s29, s25, 15
    s_mul_i32 s29, s29, 98304
    s_lshr_b32 s30, s25, 4
    s_lshl_b32 s30, s30, 10
    s_add_u32 s29, s29, s30
    s_mul_i32 s30, s24, 6144
    s_add_u32 s29, s29, s30
    s_add_u32 s29, s29, {WS_WQ}
    s_add_u32 s30, s29, 3072
    s_branch k2_g_go
    """)
    a.label("k2_g_wo")
    srd(a, 12, 34, 35, 512 * 1024)
    a(f"""
    s_sub_u32 s25, s25, 24
    s_lshl_b32 s25, s25, 1
    s_add_u32 s25, s25, s23          ; stile (16)
    v_and_b32 v4, 31, v1
    v_lshlrev_b32 v4, 10, v4
    v_lshrrev_b32 v5, 5, v1
    v_lshl_add_u32 v4, v5, 4, v4     ; row*1024 + 16h
    s_lshl_b32 s26, s24, 15
    s_movk_i32 s27, 32
    s_lshl_b32 s28, s25, 15
    s_add_u32 s28, s28, {WS_FA}
    s_lshl_b32 s29, s25, 15
    s_lshl_b32 s30, s24, 11
    s_add_u32 s29, s29, s30
    s_add_u32 s29, s29, {WS_WO2}
    s_add_u32 s30, s29, 1024
    """)
    a.label("k2_g_go")
    ACC = 8
    FR = 32
    for half in range(2):
        for k in range(16):
            a(f"""
            buffer_load_dwordx4 {vr(FR+8*k,4)}, v4, s[12:15], s26 offen
            buffer_load_dwordx4 {vr(FR+8*k+4,4)}, v3, s[8:11], s28 offen
            s_add_u32 s26, s26, s27
            s_add_u32 s28, s28, 1024
            """)
        for k in range(16):
            a(f"s_waitcnt vmcnt({30-2*k})")
            a(f"{M32} {vr(ACC,16)}, {vr(FR+8*k,4)}, {vr(FR+8*k+4,4)}, " + ("0" if (half == 0 and k == 0) else vr(ACC,16)))
    for i in range(8):
        a(f"v_cvt_pk_bf16_f32 v{24+i}, v{ACC+2*i}, v{ACC+2*i+1}")
    a(f"""
    buffer_store_dwordx4 v[24:27], v3, s[8:11], s29 offen
    buffer_store_dwordx4 v[28:31], v3, s[8:11], s30 offen
    """)
    a.label("k2_done")
    a("s_endpgm")
    kernels.append(("k2a_kernel", 216, 64))
    kernels.append(("k2b_kernel", 216, 64))

def gen_k3(a):
    entry(a, "k3a_kernel")
    a(f"""
    s_mov_b32 s44, {WS_X1}
    s_mov_b32 s45, {WS_Q1}
    s_branch k3_body
    """)
    entry(a, "k3b_kernel")
    a(f"""
    s_mov_b32 s44, {WS_X3}
    s_mov_b32 s45, {WS_Q2}
    """)
    a.label("k3_body")
    prologue(a, 256, "k3_done")
    ws_srd(a)
    CH = 28672
    NB = 5
    a(f"""
    s_and_b32 s21, s2, 7
    s_lshr_b32 s22, s2, 3
    s_and_b32 s23, s21, 3
    s_lshl_b32 s23, s23, 2
    s_and_b32 s24, s22, 3
    s_add_u32 s23, s23, s24          ; mt
    s_lshr_b32 s24, s21, 2
    s_lshl_b32 s24, s24, 3
    s_lshr_b32 s25, s22, 2
    s_add_u32 s24, s24, s25          ; nt
    v_and_b32 v3, 31, v1
    v_lshrrev_b32 v4, 5, v1
    v_lshlrev_b32 v5, 13, v4
    v_lshl_add_u32 v5, v3, 4, v5
    v_lshlrev_b32 v6, 4, v1
    s_lshl_b32 s26, s23, 9
    s_add_u32 s26, s26, s44
    s_lshl_b32 s27, s20, 16
    s_add_u32 s26, s26, s27
    s_mul_i32 s27, s24, 98304
    s_mul_i32 s28, s20, 3072
    s_add_u32 s27, s27, s28
    s_add_u32 s27, s27, {WS_WQ}
    s_lshl_b32 s29, s20, 12
    s_add_u32 s30, s28, 16384
    """)
    def issue(c):
        buf = (c % NB) * CH
        for i in range(4):
            a(f"""
            s_add_u32 m0, s29, {buf + 1024*i}
            s_add_u32 s31, s26, {c*32*8192 + i*16384}
            buffer_load_dwordx4 v5, s[8:11], s31 offen lds
            """)
        a(f"""
        s_add_u32 m0, s30, {buf}
        s_add_u32 s31, s27, {c*12288}
        buffer_load_dwordx4 v6, s[8:11], s31 offen lds
        buffer_load_dwordx4 v6, s[8:11], s31 offen offset:1024 lds
        buffer_load_dwordx4 v6, s[8:11], s31 offen offset:2048 lds
        """)
    for c in range(NB):
        issue(c)
    a("""
    s_lshl_b32 s31, s20, 7
    v_lshlrev_b32 v7, 10, v4
    v_lshl_add_u32 v7, v3, 2, v7
    v_add_u32 v7, s31, v7
    v_mov_b32 v8, 0
    """)
    ACC = 16
    AF = 64
    BF = 80
    for c in range(8):
        buf = (c % NB) * CH
        issued = min(8, c + NB) if c == 0 else min(8, c + NB - 1)
        a(f"s_waitcnt vmcnt({7*(issued-1-c)})")
        a("s_barrier")
        if c >= 1 and c - 1 + NB < 8:
            issue(c - 1 + NB)
        a(f"v_add_u32 v9, {buf}, v7\nv_add_u32 v10, {buf+16384}, v6")
        for k in range(4):
            a(f"ds_read2st64_b32 {vr(AF+4*k,2)}, v9 offset0:{16*k} offset1:{16*k+2}")
            a(f"ds_read2st64_b32 {vr(AF+4*k+2,2)}, v9 offset0:{16*k+8} offset1:{16*k+10}")
            for t in range(3):
                a(f"ds_read_b128 {vr(BF+12*k+4*t,4)}, v10 offset:{3072*k+1024*t}")
        for k in range(4):
            a(f"s_waitcnt lgkmcnt({15-5*k})")
            first = (c == 0 and k == 0)
            a(f"{M32} {vr(ACC,16)}, {vr(BF+12*k,4)}, {vr(AF+4*k,4)}, " + ("0" if first else vr(ACC,16)))
            a(f"{M32} {vr(ACC+16,16)}, {vr(BF+12*k+4,4)}, {vr(AF+4*k,4)}, " + ("0" if first else vr(ACC+16,16)))
            a(f"{M32} {vr(ACC+32,16)}, {vr(AF+4*k,4)}, {vr(BF+12*k+8,4)}, " + ("0" if first else vr(ACC+32,16)))
            for i in range(4):
                a(f"v_dot2_f32_bf16 v8, v{AF+4*k+i}, v{AF+4*k+i}, v8")
    RL = NB * CH
    a(f"""
    v_mov_b32 v9, v8
    v_permlane32_swap_b32 v8, v9
    v_add_f32 v8, v8, v9
    v_mov_b32 v9, {fhex(1e-5)}
    v_fmamk_f32 v8, v8, {fhex(1/512)}, v9
    v_rsq_f32 v8, v8
    s_lshl_b32 s31, s20, 7
    s_add_u32 s31, s31, {RL}
    v_lshl_add_u32 v10, v3, 2, s31
    ds_write_b32 v10, v8
    v_lshl_add_u32 v10, v4, 4, s31
    v_mul_f32 v9, {fhex(0.25*math.log2(math.e))}, v8
    s_waitcnt lgkmcnt(0)
    """)
    for q in range(4):
        a(f"ds_read_b128 {vr(AF+4*q,4)}, v10 offset:{32*q}")
    for r in range(16):
        a(f"v_mul_f32 v{ACC+r}, v{ACC+r}, v9")
        a(f"v_mul_f32 v{ACC+16+r}, v{ACC+16+r}, v8")
    for i in range(16):
        a(f"v_cvt_pk_bf16_f32 v{BF+i}, v{ACC+2*i}, v{ACC+2*i+1}")
    a(f"""
    s_lshl_b32 s26, s24, 17
    s_lshl_b32 s27, s23, 12
    s_add_u32 s26, s26, s27
    s_lshl_b32 s27, s20, 10
    s_add_u32 s26, s26, s27
    s_add_u32 s26, s26, s45
    s_add_u32 s27, s26, 65536
    s_add_u32 s28, s26, {2*MB}
    s_add_u32 s29, s27, {2*MB}
    s_add_u32 s30, s26, {4*MB}
    buffer_store_dwordx4 {vr(BF,4)}, v6, s[8:11], s26 offen
    buffer_store_dwordx4 {vr(BF+4,4)}, v6, s[8:11], s27 offen
    buffer_store_dwordx4 {vr(BF+8,4)}, v6, s[8:11], s28 offen
    buffer_store_dwordx4 {vr(BF+12,4)}, v6, s[8:11], s29 offen
    ; V voffset: (l31>>4)*65536 + h*256 + (l&15)*16
    v_lshrrev_b32 v11, 4, v3
    v_lshlrev_b32 v11, 16, v11
    v_lshl_add_u32 v11, v4, 8, v11
    v_and_b32 v12, 15, v1
    v_lshl_add_u32 v11, v12, 4, v11
    s_waitcnt lgkmcnt(0)
    """)
    for r in range(16):
        a(f"v_mul_f32 v{ACC+32+r}, v{ACC+32+r}, v{AF+r}")
    for i in range(8):
        a(f"v_cvt_pk_bf16_f32 v{BF+16+i}, v{ACC+32+2*i}, v{ACC+32+2*i+1}")
    a(f"""
    buffer_store_dwordx4 {vr(BF+16,4)}, v11, s[8:11], s30 offen
    buffer_store_dwordx4 {vr(BF+20,4)}, v11, s[8:11], s30 offen offset:512
    """)
    a.label("k3_done")
    a("s_endpgm")
    kernels.append(("k3a_kernel", 128, 64))
    kernels.append(("k3b_kernel", 128, 64))
    return RL + 512

def gen_k4(a):
    entry(a, "k4a_kernel")
    a(f"""
    s_mov_b32 s44, {WS_Q1}
    s_mov_b32 s45, {WS_O1}
    s_mov_b32 s46, 0
    s_branch k4_body
    """)
    entry(a, "k4b_kernel")
    a(f"""
    s_mov_b32 s44, {WS_Q2}
    s_mov_b32 s45, {WS_OS}
    s_mov_b32 s46, -1
    """)
    a.label("k4_body")
    prologue(a, 256, "k4_done")
    ws_srd(a)
    Q = 8; OP = 12; NM = 16; O = 32; S = (48, 64); P = 80; KF = (88, 92); VF = (96, 104); T = 112
    a(f"""
    s_and_b32 s21, s2, 31            ; head
    s_lshr_b32 s22, s2, 5            ; qb
    s_lshl_b32 s22, s22, 3
    s_add_u32 s22, s22, s20          ; q tile
    v_lshlrev_b32 v3, 4, v1
    s_lshl_b32 s23, s21, 16
    s_add_u32 s23, s23, s44
    s_lshl_b32 s24, s22, 10
    s_add_u32 s24, s24, s23
    buffer_load_dwordx4 {vr(Q,4)}, v3, s[8:11], s24 offen
    s_lshl_b32 s25, s20, 10          ; wave*1024
    s_add_u32 s26, s23, s25
    s_add_u32 s26, s26, {2*MB}       ; K src
    s_add_u32 s27, s26, {2*MB}       ; V src
    """)
    for c in range(8):
        a(f"""
        s_add_u32 m0, s25, {c*8192}
        s_add_u32 s28, s26, {c*8192}
        buffer_load_dwordx4 v3, s[8:11], s28 offen lds
        s_add_u32 m0, s25, {65536 + c*8192}
        s_add_u32 s28, s27, {c*8192}
        buffer_load_dwordx4 v3, s[8:11], s28 offen lds
        """)
    a(f"""
    s_lshl_b32 s29, s22, 15
    s_lshl_b32 s30, s21, 10
    s_add_u32 s29, s29, s30
    s_add_u32 s30, s29, {WS_O1}
    buffer_load_dwordx4 {vr(OP,4)}, v3, s[8:11], s30 offen
    s_add_u32 s29, s29, s45
    v_lshrrev_b32 v4, 5, v1
    v_lshlrev_b32 v4, 8, v4
    v_and_b32 v5, 15, v1
    v_lshl_add_u32 v4, v5, 4, v4
    v_add_u32 v4, 0x10000, v4
    s_mov_b32 s32, 0x0000ffff
    s_mov_b32 s33, 0x0000ffff
    """)
    for i in range(16):
        a(f"v_mov_b32 v{VF[0]+i}, 0x3f803f80")
    a("""
    s_mov_b32 s34, 0
    s_waitcnt vmcnt(15)
    s_barrier
    """)
    a(f"""
    ds_read_b128 {vr(KF[0],4)}, v3
    s_waitcnt lgkmcnt(0)
    {M32} {vr(S[0],16)}, {vr(KF[0],4)}, {vr(Q,4)}, 0
    """)
    def maxtree(src, dst, first):
        if first:
            a(f"v_max3_f32 v{dst}, v{src}, v{src+1}, v{src+2}")
            a(f"v_max_f32 v{dst}, v{dst}, v{src+3}")
            rest = range(4, 16, 2)
        else:
            rest = range(0, 16, 2)
        for i in rest:
            a(f"v_max3_f32 v{dst}, v{dst}, v{src+i}, v{src+i+1}")
    maxtree(S[0], T, True)
    a.label("k4_setmax")
    a(f"""
    v_mov_b32 v{T+1}, v{T}
    v_permlane32_swap_b32 v{T}, v{T+1}
    v_max_f32 v{T}, v{T}, v{T+1}
    """)
    for i in range(16):
        a(f"v_sub_f32 v{NM+i}, 0, v{T}")
    for i in range(16):
        a(f"v_mov_b32 v{O+i}, 0")
    a(f"""
    v_mov_b32 v6, v3
    v_mov_b32 v7, v4
    ds_read_b128 {vr(KF[0],4)}, v6
    ds_read_b128 {vr(KF[1],4)}, v6 offset:1024
    s_mov_b64 exec, s[32:33]
    ds_read_b128 {vr(VF[0],4)}, v7
    ds_read_b128 {vr(VF[0]+4,4)}, v7 offset:512
    s_mov_b64 exec, -1
    s_waitcnt lgkmcnt(3)
    {M32} {vr(S[0],16)}, {vr(KF[0],4)}, {vr(Q,4)}, {vr(NM,16)}
    s_mov_b32 s35, 0
    """)
    a.raw(".p2align 6")
    a.label("k4_loop")
    for t in range(8):
        cur, nxt = t & 1, (t + 1) & 1
        if t == 6:
            a("""
            s_or_b32 s36, s35, s34
            s_cmp_lg_u32 s36, 0
            s_cbranch_scc1 k4_nosync
            s_waitcnt vmcnt(0)
            s_barrier
            """)
            a.label("k4_nosync")
        a(f"s_waitcnt lgkmcnt(2)")
        a(f"{M32} {vr(S[nxt],16)}, {vr(KF[nxt],4)}, {vr(Q,4)}, {vr(NM,16)}")
        a(f"ds_read_b128 {vr(KF[cur],4)}, v6 offset:{(t+2)*1024}")
        a(f"""
        s_mov_b64 exec, s[32:33]
        ds_read_b128 {vr(VF[nxt],4)}, v7 offset:{(t+1)*1024}
        ds_read_b128 {vr(VF[nxt]+4,4)}, v7 offset:{(t+1)*1024+512}
        s_mov_b64 exec, -1
        """)
        for i in range(8):
            a(f"v_exp_f32 v{S[cur]+i}, v{S[cur]+i}")
        for i in range(4):
            a(f"v_cvt_pk_bf16_f32 v{P+i}, v{S[cur]+2*i}, v{S[cur]+2*i+1}")
        a(f"v_exp_f32 v{S[cur]+8}, v{S[cur]+8}")
        a(f"v_exp_f32 v{S[cur]+9}, v{S[cur]+9}")
        a(f"s_waitcnt lgkmcnt(3)")
        a(f"{M32} {vr(O,16)}, {vr(VF[cur],4)}, {vr(P,4)}, {vr(O,16)}")
        for i in range(10, 16):
            a(f"v_exp_f32 v{S[cur]+i}, v{S[cur]+i}")
        for i in range(4, 8):
            a(f"v_cvt_pk_bf16_f32 v{P+i}, v{S[cur]+2*i}, v{S[cur]+2*i+1}")
        if t == 7:
            a("""
            v_add_u32 v6, 0x2000, v6
            v_add_u32 v7, 0x2000, v7
            """)
        else:
            a("s_nop 1")
        a(f"{M32} {vr(O,16)}, {vr(VF[cur]+4,4)}, {vr(P+4,4)}, {vr(O,16)}")
    a("""
    s_add_u32 s35, s35, 1
    s_cmp_lt_u32 s35, 8
    s_cbranch_scc1 k4_loop
    s_waitcnt lgkmcnt(0)
    """)
    a(f"""
    v_max3_f32 v{T}, |v{O}|, |v{O+1}|, |v{O+2}|
    v_max3_f32 v{T}, v{T}, |v{O+3}|, |v{O+4}|
    v_max3_f32 v{T}, v{T}, |v{O+5}|, |v{O+6}|
    v_max_f32 v{T}, v{T}, |v{O+7}|
    v_mul_f32 v{T+1}, {fhex(2.0**60)}, v{O+8}
    v_max_f32 v{T}, v{T}, v{T+1}
    v_add_f32 v{T+1}, v{O}, v{O+1}
    v_add_f32 v{T+2}, v{O+2}, v{O+3}
    v_add_f32 v{T+3}, v{O+4}, v{O+5}
    v_add_f32 v{T+4}, v{O+6}, v{O+7}
    v_add_f32 v{T+1}, v{T+1}, v{T+2}
    v_add_f32 v{T+3}, v{T+3}, v{T+4}
    v_add_f32 v{T+1}, v{T+1}, v{T+3}
    v_add_f32 v{T+1}, v{T+1}, v{O+8}
    v_mul_f32 v{T+1}, 0, v{T+1}
    v_add_f32 v{T}, v{T}, v{T+1}
    v_mov_b32 v{T+2}, {fhex(2.0**120)}
    v_cmp_nlt_f32 vcc, v{T}, v{T+2}
    s_cmp_lg_u32 s34, 0
    s_cbranch_scc1 k4_fin
    s_cbranch_vccz k4_fin
    s_mov_b32 s34, 1
    v_mov_b32 v6, v3
    v_mov_b32 v{T}, 0xff800000
    s_mov_b32 s35, 0
    """)
    a.label("k4_maxloop")
    a(f"""
    ds_read_b128 {vr(KF[0],4)}, v6
    v_add_u32 v6, 1024, v6
    s_waitcnt lgkmcnt(0)
    {M32} {vr(S[0],16)}, {vr(KF[0],4)}, {vr(Q,4)}, 0
    """)
    maxtree(S[0], T, False)
    a("""
    s_add_u32 s35, s35, 1
    s_cmp_lt_u32 s35, 64
    s_cbranch_scc1 k4_maxloop
    s_branch k4_setmax
    """)
    a.label("k4_fin")
    a(f"v_rcp_f32 v{T}, v{O+8}")
    for i in range(4):
        a(f"""
        v_and_b32 v{OP+i}, s46, v{OP+i}
        v_lshlrev_b32 v{T+2}, 16, v{OP+i}
        v_and_b32 v{T+3}, 0xffff0000, v{OP+i}
        v_fmac_f32 v{T+2}, v{O+2*i}, v{T}
        v_fmac_f32 v{T+3}, v{O+2*i+1}, v{T}
        v_cvt_pk_bf16_f32 v{P+i}, v{T+2}, v{T+3}
        """)
    a(f"buffer_store_dwordx4 {vr(P,4)}, v3, s[8:11], s29 offen")
    a.label("k4_done")
    a("s_endpgm")
    kernels.append(("k4a_kernel", 120, 64))
    kernels.append(("k4b_kernel", 120, 64))
    return 131072 + 2048

def gen_k5(a):
    entry(a, "k5_kernel")
    prologue(a, 256, "k5_done")
    ws_srd(a)
    a(f"""
    s_and_b32 s21, s2, 7
    s_lshr_b32 s22, s2, 3
    s_lshl_b32 s21, s21, 2
    s_and_b32 s23, s22, 3
    s_add_u32 s21, s21, s23
    s_lshr_b32 s22, s22, 2
    v_lshlrev_b32 v5, 4, v1
    v_and_b32 v3, 31, v1
    v_lshrrev_b32 v4, 5, v1
    s_and_b32 s40, s20, 1            ; wt
    s_lshr_b32 s39, s20, 1           ; ws
    s_lshl_b32 s24, s22, 16
    s_add_u32 s24, s24, {WS_WO2}
    s_lshl_b32 s25, s21, 16
    s_add_u32 s25, s25, {WS_O1}
    s_cmp_lg_u32 s39, 0
    s_cselect_b32 s24, s25, s24
    s_lshl_b32 s25, s40, 15
    s_add_u32 s24, s24, s25
    s_lshl_b32 s26, s20, 15
    """)
    for q in range(8):
        a(f"s_add_u32 m0, s26, {4096*q}\ns_add_u32 s27, s24, {4096*q}")
        for i in range(4):
            a(f"buffer_load_dwordx4 v5, s[8:11], s27 offen offset:{1024*i} lds")
    a(f"""
    s_lshl_b32 s41, s22, 1
    s_add_u32 s41, s41, s39
    s_lshl_b32 s42, s41, 17
    s_lshl_b32 s43, s21, 8
    s_add_u32 s42, s42, s43
    s_lshl_b32 s43, s40, 5
    v_add_u32 v11, s43, v3           ; a
    v_lshlrev_b32 v13, 14, v4
    v_lshl_add_u32 v13, v11, 2, v13
    v_add_u32 v13, s42, v13
    """)
    RES = 16; ACC = 32; FR = 48; T = 24
    for r in range(0, 16, 2):
        c = (((r & 3) >> 1) + 4 * (r >> 2)) * 8192
        a(f"s_mov_b32 s44, {WS_X1 + c}\nbuffer_load_dword v{RES+r//2}, v13, s[8:11], s44 offen")
    a("""
    s_lshl_b32 s27, s39, 15
    v_add_u32 v6, s27, v5
    s_lshl_b32 s27, s40, 15
    s_add_u32 s27, s27, 0x10000
    v_add_u32 v7, s27, v5
    """)
    for c in range(4):
        a(f"s_waitcnt vmcnt({8 + 24 - 8*c})\ns_barrier")
        for k in range(8):
            a(f"ds_read_b128 {vr(FR+8*k,4)}, v6 offset:{1024*(8*c+k)}")
            a(f"ds_read_b128 {vr(FR+8*k+4,4)}, v7 offset:{1024*(8*c+k)}")
        for k in range(8):
            a(f"s_waitcnt lgkmcnt({14-2*k})")
            a(f"{M32} {vr(ACC,16)}, {vr(FR+8*k,4)}, {vr(FR+8*k+4,4)}, " + ("0" if c == 0 and k == 0 else vr(ACC,16)))
    a("s_waitcnt vmcnt(0)\nv_mov_b32 v8, 0")
    for r in range(0, 16, 2):
        c = (((r & 3) >> 1) + 4 * (r >> 2)) * 8192
        a(f"""
        v_lshlrev_b32 v9, 16, v{RES+r//2}
        v_and_b32 v10, 0xffff0000, v{RES+r//2}
        v_add_f32 v9, v9, v{ACC+r}
        v_add_f32 v10, v10, v{ACC+r+1}
        v_cvt_pk_bf16_f32 v{T+r//2}, v9, v10
        v_fmac_f32 v8, v9, v9
        v_fmac_f32 v8, v10, v10
        s_mov_b32 s44, {WS_X2 + c}
        buffer_store_dword v{T+r//2}, v13, s[8:11], s44 offen
        """)
    a(f"""
    s_lshl_b32 s43, s21, 8
    s_add_u32 s43, s43, {WS_SSQ2}
    v_lshlrev_b32 v12, 2, v11
    buffer_atomic_add_f32 v8, v12, s[8:11], s43 offen
    """)
    a.label("k5_done")
    a("s_endpgm")
    kernels.append(("k5_kernel", 112, 64))

def gen_k9(a):
    entry(a, "k9_kernel")
    prologue(a, 256, "k9_done")
    a("""
    s_load_dwordx2 s[24:25], s[0:1], 0
    s_load_dwordx2 s[26:27], s[0:1], 48
    """)
    ws_srd(a)
    srd(a, 12, 24, 25, 2 * MB)
    srd(a, 16, 26, 27, 2 * MB)
    a(f"""
    s_and_b32 s21, s2, 7
    s_lshr_b32 s22, s2, 3
    s_lshl_b32 s21, s21, 2
    s_and_b32 s23, s22, 3
    s_add_u32 s21, s21, s23          ; tt
    s_lshr_b32 s22, s22, 2
    v_lshlrev_b32 v5, 4, v1
    v_and_b32 v3, 31, v1
    v_lshrrev_b32 v4, 5, v1
    s_and_b32 s40, s20, 1            ; wt
    s_lshr_b32 s39, s20, 1           ; wc
    s_lshl_b32 s28, s22, 17
    s_add_u32 s28, s28, {WS_FT}
    s_lshl_b32 s29, s20, 15
    s_add_u32 s28, s28, s29
    """)
    for q in range(8):
        a(f"s_add_u32 m0, s29, {4096*q}\ns_add_u32 s30, s28, {4096*q}")
        for i in range(4):
            a(f"buffer_load_dwordx4 v5, s[8:11], s30 offen offset:{1024*i} lds")
    BF = 64
    ACC = 16; RES = 32; AF = 40
    a(f"""
    s_lshl_b32 s30, s21, 16
    s_lshl_b32 s31, s40, 15
    s_add_u32 s30, s30, s31
    s_add_u32 s30, s30, {WS_OS}
    """)
    for q in range(8):
        a(f"s_add_u32 s31, s30, {4096*q}")
        for i in range(4):
            a(f"buffer_load_dwordx4 {vr(BF+16*q+4*i,4)}, v5, s[8:11], s31 offen offset:{1024*i}")
    a(f"""
    s_lshl_b32 s43, s40, 5
    v_add_u32 v11, s43, v3           ; a
    v_lshlrev_b32 v13, 15, v11
    v_lshl_add_u32 v13, v4, 5, v13
    s_lshl_b32 s42, s21, 10
    s_lshl_b32 s43, s22, 7
    s_add_u32 s42, s42, s43
    s_lshl_b32 s43, s39, 6
    s_add_u32 s42, s42, s43
    s_lshl_b32 s27, s39, 16
    v_add_u32 v6, s27, v5
    v_lshlrev_b32 v7, 15, v4
    v_lshl_add_u32 v7, v11, 2, v7
    s_lshl_b32 s43, s21, 8
    v_add_u32 v7, s43, v7
    s_waitcnt vmcnt(0)
    s_barrier
    buffer_load_dwordx4 {vr(RES,4)}, v13, s[12:15], s42 offen
    buffer_load_dwordx4 {vr(RES+4,4)}, v13, s[12:15], s42 offen offset:16
    """)
    for q in range(8):
        for i in range(4):
            a(f"ds_read_b128 {vr(AF+4*i,4)}, v6 offset:{32768 + 1024*(4*q+i)}")
        for i in range(4):
            a(f"s_waitcnt lgkmcnt({3-i})")
            a(f"{M32} {vr(ACC,16)}, {vr(AF+4*i,4)}, {vr(BF+16*q+4*i,4)}, " + ("0" if q == 0 and i == 0 else vr(ACC,16)))
        for i in range(4):
            for jj in range(4):
                a(f"s_mov_b32 s31, {WS_YS + (8*(4*q+i)+jj)*8192}")
                a(f"buffer_load_dword v{BF+16*q+4*i+jj}, v7, s[8:11], s31 offen")
    for q in range(8):
        for i in range(4):
            a(f"ds_read_b128 {vr(AF+4*i,4)}, v6 offset:{1024*(4*q+i)}")
        a(f"s_waitcnt vmcnt({min(63, 16*(7-q))})")
        for i in range(4):
            a(f"s_waitcnt lgkmcnt({3-i})")
            a(f"{M32} {vr(ACC,16)}, {vr(AF+4*i,4)}, {vr(BF+16*q+4*i,4)}, {vr(ACC,16)}")
    for i in range(8):
        a(f"""
        v_lshlrev_b32 v9, 16, v{RES+i}
        v_and_b32 v10, 0xffff0000, v{RES+i}
        v_add_f32 v9, v9, v{ACC+2*i}
        v_add_f32 v10, v10, v{ACC+2*i+1}
        v_cvt_pk_bf16_f32 v{RES+i}, v9, v10
        """)
    a(f"""
    buffer_store_dwordx4 {vr(RES,4)}, v13, s[16:19], s42 offen
    buffer_store_dwordx4 {vr(RES+4,4)}, v13, s[16:19], s42 offen offset:16
    """)
    a.label("k9_done")
    a("s_endpgm")
    kernels.append(("k9_kernel", 192, 64))

def main(out):
    gen_k1(A)
    gen_k2(A)
    lds3 = gen_k3(A)
    lds4 = gen_k4(A)
    gen_k5(A)
    gen_k9(A)
    body = A.finish()
    launches = [
        ("k1_kernel", 512, 256, 66560),
        ("k2a_kernel", 512, 256, 16896),
        ("k3a_kernel", 256, 256, lds3),
        ("k4a_kernel", 256, 512, lds4),
        ("k5_kernel", 256, 256, 131072),
        ("k2b_kernel", 256, 256, 16896),
        ("k3b_kernel", 256, 256, lds3),
        ("k4b_kernel", 256, 512, lds4),
        ("k9_kernel", 256, 256, 131072),
    ]
    head = "; generated by work/gen1.py\n"
    for k, g, b, l in launches:
        head += f"; @launch kernel={k} grid=({g},1,1) block=({b},1,1) lds={l}\n"
    head += '.amdgcn_target "amdgcn-amd-amdhsa--gfx950"\n.text\n'
    tail = '.section .rodata,"a"\n'
    for k, v, s in kernels:
        v4 = (v + 3) // 4 * 4
        tail += f""".p2align 6
.amdhsa_kernel {k}
  .amdhsa_next_free_vgpr {v4}
  .amdhsa_next_free_sgpr {s}
  .amdhsa_accum_offset {v4}
  .amdhsa_group_segment_fixed_size 0
  .amdhsa_kernarg_size 72
  .amdhsa_user_sgpr_count 2
  .amdhsa_user_sgpr_kernarg_segment_ptr 1
  .amdhsa_system_sgpr_workgroup_id_x 1
.end_amdhsa_kernel
"""
    open(out, "w").write(head + body + tail)
    print("written", out, "nops:", A.count_nops())

if __name__ == "__main__":
    main(sys.argv[1] if len(sys.argv) > 1 else f"cdna_kernels/{NAME}.s")
```
